```python
import torch

def _softmax(x, axis=-1):
    return torch.softmax(x, dim=axis)
def _gelu(x):
    return torch.nn.functional.gelu(x, approximate="tanh")
def _silu(x):
    return torch.nn.functional.silu(x)
def _sigmoid(x):
    return torch.sigmoid(x)
def _layernorm(x, axis=-1, eps=1e-5):
    m = x.mean(dim=axis, keepdim=True)
    v = x.var(dim=axis, keepdim=True, unbiased=False)
    return (x - m) / torch.sqrt(v + eps)
def _scatter_add(tgt, idx, src, axis=0):
    return tgt.clone().index_add_(axis, idx, src)
def _segment_sum(src, seg, n):
    out = torch.zeros((n,) + src.shape[1:], dtype=src.dtype)
    return out.index_add_(0, seg, src)
def _pad(x, pw):
    flat = tuple(v for pair in reversed(pw) for v in pair)
    return torch.nn.functional.pad(x, flat)

kernel_name = 'standalone__edge_featured_mpnn_gatedgcn__graph'

def setup_inputs():

    _w = (lambda a: (lambda t: t.to(torch.bfloat16) if t.is_floating_point() else t)(torch.as_tensor(a)))
    N, deg, D, De = 25000, 32, 64, max(16, 1)
    E = N * deg
    return {
        "x": _w((lambda *s: torch.randn(*s, dtype=torch.bfloat16) * 0.8)(N, D)),
        "e_attr": _w((lambda *s: torch.randn(*s, dtype=torch.bfloat16) * 0.8)(E, De)),
        "src": _w((lambda lo, hi, *s: torch.randint(lo, hi, s))(0, N, E).to(torch.int64)),
        "dst": _w((lambda lo, hi, *s: torch.randint(lo, hi, s))(0, N, E).to(torch.int64)),
        "w_a": _w((lambda *s: torch.randn(*s, dtype=torch.bfloat16) * 0.8)(D, D)),
        "w_b": _w((lambda *s: torch.randn(*s, dtype=torch.bfloat16) * 0.8)(D, D)),
        "w_c": _w((lambda *s: torch.randn(*s, dtype=torch.bfloat16) * 0.8)(De, D)),
        "w_u": _w((lambda *s: torch.randn(*s, dtype=torch.bfloat16) * 0.05)(D, D)),
        "w_v": _w((lambda *s: torch.randn(*s, dtype=torch.bfloat16) * 0.05)(D, D)),
    }

def reference(x, e_attr, src, dst, w_a, w_b, w_c, w_u, w_v):
    N, D = x.shape
    hv = x @ w_v
    g = x[dst] @ w_a + x[src] @ w_b + e_attr @ w_c
    eta = _sigmoid(g)
    denom = _segment_sum(eta, dst, N) + 1e-6
    eta_n = eta / denom[dst]
    agg = _segment_sum(eta_n * hv[src], dst, N)
    z = x @ w_u + agg
    relu_z = torch.where(z > 0, z, 0 * z)
    return x + relu_z
```

```python
import sys
NAME="standalone__edge_featured_mpnn_gatedgcn__graph"
E=800000; N=25000; G1=256; CH=3125; NB=512; S=16
OFFB=8<<20; OSTR=2080; FRAG=12<<20
ACC=0; HIST=37632; START=37888; MISC=38144; LIST=38208
LDS2=LIST+4500*8
o=[]
def A(s): o.append(s)
def scan(v):
    for sh in (1,2,4,8):
        A("s_nop 1"); A(f"v_add_u32_dpp {v}, {v}, {v} row_shr:{sh} row_mask:0xf bank_mask:0xf bound_ctrl:0")
    A("s_nop 1"); A(f"v_add_u32_dpp {v}, {v}, {v} row_bcast:15 row_mask:0xa bank_mask:0xf")
    A("s_nop 1"); A(f"v_add_u32_dpp {v}, {v}, {v} row_bcast:31 row_mask:0xc bank_mask:0xf")
    A("s_nop 1")
def srd(d,p,size):
    A(f"s_mov_b32 s{d}, s{p}"); A(f"s_mov_b32 s{d+1}, s{p+1}"); A(f"s_mov_b32 s{d+2}, {size}"); A(f"s_mov_b32 s{d+3}, 0x00020000")
def kd(name,vg):
    return f""".section .rodata,"a"
.p2align 6
.amdhsa_kernel {name}
  .amdhsa_next_free_vgpr {vg}
  .amdhsa_next_free_sgpr 102
  .amdhsa_accum_offset {vg}
  .amdhsa_group_segment_fixed_size 0
  .amdhsa_kernarg_size 96
  .amdhsa_user_sgpr_count 2
  .amdhsa_user_sgpr_kernarg_segment_ptr 1
  .amdhsa_system_sgpr_workgroup_id_x 1
.end_amdhsa_kernel
.text"""
A(f"; @launch kernel=part_kernel grid=(257,1,1) block=(256,1,1) lds=2048")
A(f"; @launch kernel=main_kernel grid=(512,1,1) block=(256,1,1) lds={LDS2}")
A('.amdgcn_target "amdgcn-amd-amdhsa--gfx950"\n.text\n.globl part_kernel\n.p2align 8\n.type part_kernel,@function\npart_kernel:')
A("s_cmp_gt_u32 s2, 256\ns_cbranch_scc1 P_END\ns_cmp_eq_u32 s2, 256\ns_cbranch_scc1 P_FRAG")
A("s_load_dwordx4 s[4:7], s[0:1], 16\ns_load_dwordx2 s[8:9], s[0:1], 88\ns_waitcnt lgkmcnt(0)")
srd(12,4,E*4); srd(16,6,E*4); srd(20,8,0x10000000)
A("v_lshlrev_b32 v1, 2, v0\nv_mov_b32 v2, 0\nds_write_b32 v1, v2\nds_write_b32 v1, v2 offset:1024\ns_waitcnt lgkmcnt(0)\ns_barrier")
A("s_mul_i32 s24, s2, 3125\ns_lshl_b32 s25, s24, 2")
NI=13
for i in range(NI):
    if i==12: A("v_cmp_gt_u32 vcc, 53, v0\ns_and_saveexec_b64 s[26:27], vcc")
    A(f"v_add_u32 v3, {i*1024}, v1")
    A(f"buffer_load_dword v{10+i}, v3, s[16:19], s25 offen\nbuffer_load_dword v{30+i}, v3, s[12:15], s25 offen")
A("s_mov_b64 exec, s[26:27]\nv_mov_b32 v4, 1\ns_waitcnt vmcnt(0)")
for i in range(NI):
    if i==12: A("s_and_saveexec_b64 s[26:27], vcc")
    A(f"v_and_b32 v5, 511, v{10+i}\nv_lshlrev_b32 v{70+i}, 2, v5\nds_add_rtn_u32 v{50+i}, v{70+i}, v4")
A("s_mov_b64 exec, s[26:27]\ns_waitcnt lgkmcnt(0)\ns_barrier")
A("v_cmp_gt_u32 vcc, 64, v0\ns_and_saveexec_b64 s[28:29], vcc\ns_cbranch_execz P_S2")
A("v_lshlrev_b32 v5, 5, v0\nds_read_b128 v[96:99], v5\nds_read_b128 v[100:103], v5 offset:16\ns_waitcnt lgkmcnt(0)")
A("v_mov_b32 v6, 0")
for k in range(8):
    A(f"v_mov_b32 v{104+k}, v6\nv_add_u32 v6, v6, v{96+k}")
A("v_mov_b32 v7, v6"); scan("v6"); A("v_sub_u32 v6, v6, v7")
for k in range(8): A(f"v_add_u32 v{104+k}, v{104+k}, v6")
A("ds_write_b128 v5, v[104:107]\nds_write_b128 v5, v[108:111] offset:16")
A(f"s_mul_i32 s30, s2, {OSTR}\ns_add_u32 s30, s30, {OFFB}")
A("buffer_store_dwordx4 v[104:107], v5, s[20:23], s30 offen\nbuffer_store_dwordx4 v[108:111], v5, s[20:23], s30 offen offset:16")
A("v_mov_b32 v8, 3125\nv_mov_b32 v9, 2048\nbuffer_store_dword v8, v9, s[20:23], s30 offen\ns_waitcnt lgkmcnt(0)")
A("P_S2:\ns_mov_b64 exec, s[28:29]\ns_barrier")
A("v_cmp_gt_u32 vcc, 53, v0")
for i in range(NI):
    if i==12: A("s_and_saveexec_b64 s[26:27], vcc")
    A(f"ds_read_b32 v5, v{70+i}\ns_waitcnt lgkmcnt(0)\nv_add_u32 v5, v5, v{50+i}\nv_lshlrev_b32 v5, 3, v5")
    A(f"v_lshrrev_b32 v6, 9, v{10+i}\nv_lshlrev_b32 v6, 20, v6\nv_add_u32 v7, {i*256}, v0\nv_add_u32 v7, s24, v7\nv_or_b32 v6, v6, v7\nv_mov_b32 v7, v{30+i}")
    A("s_lshl_b32 s31, s24, 3\nbuffer_store_dwordx2 v[6:7], v5, s[20:23], s31 offen")
A("s_mov_b64 exec, s[26:27]\ns_endpgm")
A("P_FRAG:")
A("s_load_dwordx8 s[4:11], s[0:1], 32\ns_load_dwordx2 s[12:13], s[0:1], 64\ns_load_dwordx2 s[14:15], s[0:1], 88\ns_waitcnt lgkmcnt(0)")
A("v_readfirstlane_b32 s16, v0\ns_lshr_b32 s16, s16, 6")
A("s_mov_b64 s[18:19], s[6:7]\ns_cmp_eq_u32 s16, 1\ns_cselect_b64 s[18:19], s[12:13], s[18:19]\ns_cmp_eq_u32 s16, 2\ns_cselect_b64 s[18:19], s[4:5], s[18:19]\ns_cmp_eq_u32 s16, 3\ns_cselect_b64 s[18:19], s[10:11], s[18:19]")
srd(20,18,8192); srd(24,14,0x10000000); srd(28,8,2048)
A("v_and_b32 v1, 63, v0\nv_and_b32 v2, 31, v1\nv_lshrrev_b32 v3, 5, v1\nv_lshlrev_b32 v4, 1, v2")
A("v_lshlrev_b32 v5, 12, v3\nv_add_u32 v5, v5, v4\nv_lshlrev_b32 v6, 4, v1")
A(f"s_lshl_b32 s17, s16, 13\ns_add_u32 s17, s17, {FRAG}")
for c in range(2):
    for s in range(4):
        for i in range(8):
            A(f"v_add_u32 v7, {(8*s+i)*128+c*64}, v5\nbuffer_load_ushort v{32+(c*4+s)*8+i}, v7, s[20:23], 0 offen")
A("s_waitcnt vmcnt(0)")
for f in range(8):
    for q in range(4): A(f"v_lshl_or_b32 v{20+q}, v{33+f*8+2*q}, 16, v{32+f*8+2*q}")
    A(f"v_add_u32 v7, {f*1024}, v6\nbuffer_store_dwordx4 v[20:23], v7, s[24:27], s17 offen\ns_nop 1")
A("v_lshlrev_b32 v5, 10, v3\nv_add_u32 v5, v5, v4")
for c in range(2):
    for i in range(8):
        A(f"v_add_u32 v7, {i*128+c*64}, v5\nbuffer_load_ushort v{10+i}, v7, s[28:31], 0 offen")
    A("s_waitcnt vmcnt(0)")
    for q in range(4): A(f"v_lshl_or_b32 v{20+q}, v{11+2*q}, 16, v{10+2*q}")
    A(f"v_add_u32 v7, {FRAG+32768+c*1024}, v6\nbuffer_store_dwordx4 v[20:23], v7, s[24:27], 0 offen")
A("P_END:\ns_endpgm")
A(kd("part_kernel",128))
A(".globl main_kernel\n.p2align 8\n.type main_kernel,@function\nmain_kernel:")
A("s_cmp_ge_u32 s2, 512\ns_cbranch_scc1 M_END")
A("s_load_dwordx4 s[4:7], s[0:1], 0\ns_load_dwordx2 s[8:9], s[0:1], 72\ns_load_dwordx2 s[10:11], s[0:1], 88\ns_waitcnt lgkmcnt(0)")
srd(12,4,N*128); srd(16,6,E*32); srd(20,8,N*128); srd(24,10,0x10000000)
A("v_and_b32 v1, 63, v0\nv_and_b32 v2, 31, v1\nv_lshlrev_b32 v2, 2, v2\nv_lshrrev_b32 v3, 5, v1\nv_readfirstlane_b32 s28, v0\ns_lshr_b32 s28, s28, 6")
A("v_lshlrev_b32 v4, 4, v0\nv_mov_b32 v240, 0\nv_mov_b32 v241, 0\nv_mov_b32 v242, 0\nv_mov_b32 v243, 0")
for i in range(10):
    if i==9: A("v_cmp_gt_u32 vcc, 48, v0\ns_and_saveexec_b64 s[30:31], vcc")
    A(f"ds_write_b128 v4, v[240:243] offset:{i*4096}")
A(f"s_mov_b64 exec, s[30:31]\nds_write_b32 v2, v240 offset:{MISC}")
A(f"v_mul_u32_u24 v5, {OSTR}, v0\ns_lshl_b32 s29, s2, 2\ns_add_u32 s29, s29, {OFFB}\nbuffer_load_dwordx2 v[6:7], v5, s[24:27], s29 offen")
A("s_waitcnt vmcnt(0) lgkmcnt(0)\ns_barrier\nv_sub_u32 v7, v7, v6")
A(f"v_mov_b32 v8, {MISC}\nds_max_u32 v8, v7")
A("v_mul_u32_u24 v9, 3125, v0\nv_add_u32 v9, v9, v6\nv_lshlrev_b32 v9, 3, v9")
def node_gemm(mat):
    A("s_lshl_b32 s32, s28, 5\nv_and_b32 v10, 31, v1\nv_add_u32 v10, s32, v10\nv_lshlrev_b32 v10, 9, v10\nv_add_u32 v10, s2, v10\nv_lshlrev_b32 v10, 7, v10\nv_lshl_add_u32 v10, v3, 6, v10")
    for s in range(4): A(f"buffer_load_dwordx4 v[{204+4*s}:{207+4*s}], v10, s[12:15], 0 offen offset:{16*s}")
    A("v_lshlrev_b32 v11, 4, v1")
    for f in range(8): A(f"v_add_u32 v12, {FRAG+mat*8192+f*1024}, v11\nbuffer_load_dwordx4 v[{64+4*f}:{67+4*f}], v12, s[24:27], 0 offen")
    A("s_waitcnt vmcnt(0)")
    for c in range(2):
        for s in range(4):
            cc = "0" if s==0 else f"v[{140+16*c}:{155+16*c}]"
            A(f"v_mfma_f32_32x32x16_bf16 v[{140+16*c}:{155+16*c}], v[{204+4*s}:{207+4*s}], v[{64+16*c+4*s}:{67+16*c+4*s}], {cc}")
    A("s_nop 15\ns_nop 3")
    A("v_lshl_add_u32 v13, v3, 2, s32")
A("s_cmp_ge_u32 s28, 2\ns_cbranch_scc1 M_NOA")
node_gemm(2)
A("s_mov_b32 s33, 0xbfb8aa3b")
for c in range(2):
    for j in range(16):
        k,r=j//4,j%4
        A(f"v_add_u32 v14, {8*k+r}, v13\nv_cmp_gt_u32 vcc, 49, v14\ns_and_saveexec_b64 s[30:31], vcc")
        A(f"v_mul_u32_u24 v15, 768, v14\nv_add_u32 v15, v15, v2\nv_mul_f32 v16, s33, v{140+16*c+j}\nds_write_b32 v15, v16 offset:{512+c*128}\ns_mov_b64 exec, s[30:31]")
A("M_NOA:")
A("v_lshlrev_b32 v11, 4, v1")
for f in range(16): A(f"v_add_u32 v12, {FRAG+f*1024}, v11\nbuffer_load_dwordx4 v[{64+4*f}:{67+4*f}], v12, s[24:27], 0 offen")
for f in range(2): A(f"v_add_u32 v12, {FRAG+32768+f*1024}, v11\nbuffer_load_dwordx4 v[{128+4*f}:{131+4*f}], v12, s[24:27], 0 offen")
A("v_mov_b32 v136, 0xc6ea\nv_cmp_eq_u32 vcc, 0, v3\nv_cndmask_b32 v136, 0, v136, vcc\nv_mov_b32 v137, 0\nv_mov_b32 v138, 0\nv_mov_b32 v139, 0\nv_mov_b32 v225, 0\nv_mov_b32 v226, 0\nv_mov_b32 v227, 0")
A(f"s_waitcnt lgkmcnt(0)\ns_barrier\nds_read_b32 v8, v8\ns_waitcnt lgkmcnt(0)\nv_readfirstlane_b32 s34, v8\ns_add_u32 s34, s34, {S-1}\ns_lshr_b32 s34, s34, 4\ns_mov_b32 s35, 0")
A("M_BATCH:\ns_cmp_ge_u32 s35, s34\ns_cbranch_scc1 M_FIN")
A(f"v_cmp_gt_u32 vcc, 64, v0\ns_and_saveexec_b64 s[30:31], vcc\nds_write_b32 v4, v240 offset:{HIST}\ns_mov_b64 exec, s[30:31]" .replace("ds_write_b32 v4","ds_write_b32 v17"))
o[-1]="v_lshlrev_b32 v17, 2, v0\n"+o[-1]
A("s_waitcnt lgkmcnt(0)\ns_barrier\ns_lshl_b32 s36, s35, 4\nv_subrev_u32 v18, s36, v7\ns_lshl_b32 s37, s36, 3")
for i in range(S):
    A(f"v_cmp_lt_i32 vcc, {i}, v18\ns_and_saveexec_b64 s[30:31], vcc\nbuffer_load_dwordx2 v[{140+2*i}:{141+2*i}], v9, s[24:27], s37 offen offset:{8*i}\ns_mov_b64 exec, s[30:31]")
A("s_waitcnt vmcnt(0)\nv_mov_b32 v19, 1")
for i in range(S):
    A(f"v_cmp_lt_i32 vcc, {i}, v18\ns_and_saveexec_b64 s[30:31], vcc\nv_bfe_u32 v20, v{140+2*i}, 20, 6\nv_lshlrev_b32 v{188+i}, 2, v20\nds_add_rtn_u32 v{172+i}, v{188+i}, v19 offset:{HIST}\ns_mov_b64 exec, s[30:31]")
A("s_waitcnt lgkmcnt(0)\ns_barrier")
A("v_cmp_gt_u32 vcc, 64, v0\ns_and_saveexec_b64 s[38:39], vcc\ns_cbranch_execz M_S2")
A(f"ds_read_b32 v20, v17 offset:{HIST}\ns_waitcnt lgkmcnt(0)\nv_add_u32 v21, 7, v20\nv_and_b32 v21, -8, v21\nv_mov_b32 v22, v21")
scan("v21")
A(f"v_sub_u32 v23, v21, v22\nds_write_b32 v17, v23 offset:{START}")
A("v_lshlrev_b32 v24, 20, v0\nv_or_b32 v24, 0x80000000, v24\nv_mov_b32 v25, 0\nv_add_u32 v26, v23, v20")
for p in range(7):
    A(f"v_add_u32 v27, {p}, v20\nv_cmp_gt_u32 vcc, v22, v27\ns_and_saveexec_b64 s[30:31], vcc\nv_add_u32 v28, {p}, v26\nv_lshlrev_b32 v28, 3, v28\nds_write_b64 v28, v[24:25] offset:{LIST}\ns_mov_b64 exec, s[30:31]")
A("v_readlane_b32 s40, v21, 63\ns_nop 3\nv_add_u32 v28, s40, v0\nv_lshlrev_b32 v28, 3, v28\nv_mov_b32 v24, 0x80000000")
A(f"ds_write_b64 v28, v[24:25] offset:{LIST}\nv_mov_b32 v29, s40\nv_mov_b32 v30, {MISC}\nds_write_b32 v30, v29 offset:4\ns_waitcnt lgkmcnt(0)")
A("M_S2:\ns_mov_b64 exec, s[38:39]\ns_barrier")
for i in range(S):
    A(f"v_cmp_lt_i32 vcc, {i}, v18\ns_and_saveexec_b64 s[30:31], vcc\nds_read_b32 v20, v{188+i} offset:{START}\ns_waitcnt lgkmcnt(0)\nv_add_u32 v20, v20, v{172+i}\nv_lshlrev_b32 v20, 3, v20\nds_write_b64 v20, v[{140+2*i}:{141+2*i}] offset:{LIST}\ns_mov_b64 exec, s[30:31]")
A(f"v_mov_b32 v30, {MISC}\nds_read_b32 v29, v30 offset:4\ns_waitcnt lgkmcnt(0)\ns_barrier\nv_readfirstlane_b32 s41, v29\ns_add_u32 s41, s41, 31\ns_lshr_b32 s41, s41, 5\ns_add_u32 s44, s41, 3\ns_lshr_b32 s44, s44, 2\ns_mul_i32 s42, s28, s44\ns_add_u32 s44, s42, s44\ns_min_u32 s41, s41, s44\ns_mov_b32 s50, -1\ns_mov_b32 s52, -1\ns_mov_b32 s53, 0")
PRE="v_mov_b32 v248, s50\nv_mul_u32_u24 v248, 768, v248\nv_add_u32 v248, v248, v2\n"
FL=PRE+"ds_add_f32 v248, v244\nds_add_f32 v248, v245 offset:128\nds_add_f32 v248, v246 offset:256\nds_add_f32 v248, v247 offset:384"
FP=PRE+"v_xor_b32 v249, 32, v1\nv_lshlrev_b32 v249, 2, v249\nds_bpermute_b32 v250, v249, v244\nds_bpermute_b32 v251, v249, v245\nds_bpermute_b32 v252, v249, v246\nds_bpermute_b32 v253, v249, v247\nds_read2_b32 v[254:255], v248 offset0:0 offset1:32\ns_waitcnt lgkmcnt(0)\nv_add_f32 v244, v244, v250\nv_add_f32 v244, v244, v254\nv_add_f32 v245, v245, v251\nv_add_f32 v245, v245, v255\nds_read2_b32 v[254:255], v248 offset0:64 offset1:96\ns_waitcnt lgkmcnt(0)\nv_add_f32 v246, v246, v252\nv_add_f32 v246, v246, v254\nv_add_f32 v247, v247, v253\nv_add_f32 v247, v247, v255\nds_write2_b32 v248, v244, v245 offset0:0 offset1:32\nds_write2_b32 v248, v246, v247 offset0:64 offset1:96"

BUF=[dict(X=204,EA=220,MK=224,GR=228),dict(X=32,EA=48,MK=52,GR=56)]
A("v_mov_b32 v53, 0\nv_mov_b32 v54, 0\nv_mov_b32 v55, 0\ns_mov_b32 s33, 0xbfb8aa3b")
def issue(B,treg):
    X,EA,MK,GR=B['X'],B['EA'],B['MK'],B['GR']
    A(f"s_sub_u32 s45, s41, 1\ns_min_u32 s45, s45, {treg}\ns_lshl_b32 s43, s45, 8\nv_lshlrev_b32 v20, 1, v2\nv_add_u32 v20, s43, v20\nds_read_b64 v[22:23], v20 offset:{LIST}")
    A(f"v_lshl_add_u32 v21, v3, 5, s43\nv_add_u32 v21, {LIST}, v21\nds_read2_b32 v[{GR}:{GR+1}], v21 offset0:0 offset1:16\nds_read2_b32 v[{GR+2}:{GR+3}], v21 offset0:32 offset1:48\ns_waitcnt lgkmcnt(0)")
    A("v_lshlrev_b32 v24, 7, v23\nv_lshl_add_u32 v24, v3, 6, v24")
    for q in range(4): A(f"buffer_load_dwordx4 v[{X+4*q}:{X+3+4*q}], v24, s[12:15], 0 offen offset:{16*q}")
    A(f"v_and_b32 v25, 0xfffff, v22\nv_lshlrev_b32 v25, 5, v25\nv_lshl_add_u32 v25, v3, 4, v25\nbuffer_load_dwordx4 v[{EA}:{EA+3}], v25, s[16:19], 0 offen")
    A(f"v_cmp_gt_i32 vcc, 0, v22\nv_mov_b32 v26, 0x3f80\nv_cndmask_b32 v{MK}, 0, v26, vcc\nv_cmp_eq_u32 vcc, 0, v3\nv_cndmask_b32 v{MK}, 0, v{MK}, vcc")
def compute(B,tag):
    X,EA,MK,GR=B['X'],B['EA'],B['MK'],B['GR']
    for k in range(4):
        A(f"v_bfe_u32 v{28+k}, v{GR+k}, 20, 6\nv_mul_u32_u24 v27, 768, v{28+k}\nv_add_u32 v27, v27, v2\nds_read2_b32 v[{232+2*k}:{233+2*k}], v27 offset0:128 offset1:160")
    A("s_waitcnt vmcnt(5)")
    for c in range(2):
        for q in range(4):
            cc = "0" if q==0 else f"v[{140+16*c}:{155+16*c}]"
            A(f"v_mfma_f32_32x32x16_bf16 v[{140+16*c}:{155+16*c}], v[{X+4*q}:{X+3+4*q}], v[{64+16*c+4*q}:{67+16*c+4*q}], {cc}")
        A(f"v_mfma_f32_32x32x16_bf16 v[{140+16*c}:{155+16*c}], v[{EA}:{EA+3}], v[{128+4*c}:{131+4*c}], v[{140+16*c}:{155+16*c}]")
        A(f"v_mfma_f32_32x32x16_bf16 v[{140+16*c}:{155+16*c}], v[{MK}:{MK+3}], v[136:139], v[{140+16*c}:{155+16*c}]")
        for q in range(4):
            cc = "0" if q==0 else f"v[{172+16*c}:{187+16*c}]"
            A(f"v_mfma_f32_32x32x16_bf16 v[{172+16*c}:{187+16*c}], v[{X+4*q}:{X+3+4*q}], v[{96+16*c+4*q}:{99+16*c+4*q}], {cc}")
    A("s_waitcnt lgkmcnt(0)\ns_nop 15\ns_nop 3")
    for k in range(4):
        L=f"{tag}{k}"
        A(f"v_readfirstlane_b32 s51, v{28+k}\ns_cmp_eq_u32 s51, s50\ns_cbranch_scc1 M_K{L}\ns_cmp_lt_i32 s50, 0\ns_cbranch_scc1 M_N{L}")
        A(f"s_cmp_eq_u32 s53, 0\ns_cbranch_scc1 M_A{L}"); A(FP); A(f"s_branch M_N{L}\nM_A{L}:"); A(FL); A("s_mov_b32 s53, 1")
        A(f"M_N{L}:\ns_mov_b32 s50, s51\nv_mov_b32 v244, 0\nv_mov_b32 v245, 0\nv_mov_b32 v246, 0\nv_mov_b32 v247, 0\nM_K{L}:")
        for c in range(2):
            for op in range(6):
                for r in range(4):
                    j=4*k+r; t=240+r
                    A([f"v_fma_f32 v{t}, v{140+16*c+j}, s33, v{232+2*k+c}",f"v_exp_f32 v{t}, v{t}",f"v_add_f32 v{t}, 1.0, v{t}",f"v_rcp_f32 v{t}, v{t}",f"v_add_f32 v{246+c}, v{246+c}, v{t}",f"v_fmac_f32 v{244+c}, v{t}, v{172+16*c+j}"][op])
A("s_cmp_ge_u32 s42, s41\ns_cbranch_scc1 M_TDONE")
issue(BUF[0],"s42")
A("M_TILE:")
A("s_add_u32 s46, s42, 1"); issue(BUF[1],"s46"); compute(BUF[0],"a")
A("s_add_u32 s42, s42, 1\ns_cmp_ge_u32 s42, s41\ns_cbranch_scc1 M_TDONE")
A("s_add_u32 s46, s42, 1"); issue(BUF[0],"s46"); compute(BUF[1],"b")
A("s_add_u32 s42, s42, 1\ns_cmp_lt_u32 s42, s41\ns_cbranch_scc1 M_TILE\nM_TDONE:\ns_waitcnt vmcnt(0)\ns_cmp_lt_i32 s50, 0\ns_cbranch_scc1 M_NF")
A(FL)
A("M_NF:\nv_mov_b32 v240, 0\ns_waitcnt lgkmcnt(0)\ns_barrier\ns_add_u32 s35, s35, 1\ns_branch M_BATCH")
A("M_FIN:\ns_cmp_ge_u32 s28, 2\ns_cbranch_scc1 M_END")
node_gemm(3)
A("v_lshrrev_b32 v31, 1, v2")
for j in range(16):
    k,r=j//4,j%4
    A(f"v_add_u32 v14, {8*k+r}, v13\nv_lshlrev_b32 v15, 9, v14\nv_add_u32 v15, s2, v15\nv_lshlrev_b32 v15, 7, v15\nv_add_u32 v{172+j}, v15, v31")
    A(f"v_mul_u32_u24 v16, 768, v14\nv_add_u32 v16, v16, v2")
    for c in range(2):
        A(f"ds_read2_b32 v[{64+32*c+2*j}:{65+32*c+2*j}], v16 offset0:{c*32} offset1:{64+c*32}\nbuffer_load_ushort v{204+16*c+j}, v{172+j}, s[12:15], 0 offen offset:{c*64}")
A("s_waitcnt vmcnt(0) lgkmcnt(0)")
for c in range(2):
    for j in range(16):
        n,d,x=64+32*c+2*j,65+32*c+2*j,204+16*c+j
        A(f"v_add_f32 v{d}, 0x358637bd, v{d}\nv_rcp_f32 v{d}, v{d}\ns_nop 0\nv_fma_f32 v18, v{n}, v{d}, v{140+16*c+j}\nv_max_f32 v18, 0, v18\nv_lshlrev_b32 v{x}, 16, v{x}\nv_add_f32 v18, v18, v{x}\nv_cvt_pk_bf16_f32 v18, v18, v18\nbuffer_store_short v18, v{172+j}, s[20:23], 0 offen offset:{c*64}")
A("M_END:\ns_endpgm")
A(kd("main_kernel",256))
open(f"cdna_kernels/{NAME}.s","w").write("\n".join(o)+"\n")
```
